```python
import torch

def _softmax(x, axis=-1):
    return torch.softmax(x, dim=axis)
def _gelu(x):
    return torch.nn.functional.gelu(x, approximate="tanh")
def _silu(x):
    return torch.nn.functional.silu(x)
def _sigmoid(x):
    return torch.sigmoid(x)
def _layernorm(x, axis=-1, eps=1e-5):
    m = x.mean(dim=axis, keepdim=True)
    v = x.var(dim=axis, keepdim=True, unbiased=False)
    return (x - m) / torch.sqrt(v + eps)
def _scatter_add(tgt, idx, src, axis=0):
    return tgt.clone().index_add_(axis, idx, src)
def _segment_sum(src, seg, n):
    out = torch.zeros((n,) + src.shape[1:], dtype=src.dtype)
    return out.index_add_(0, seg, src)
def _pad(x, pw):
    flat = tuple(v for pair in reversed(pw) for v in pair)
    return torch.nn.functional.pad(x, flat)

kernel_name = 'standalone__instancenorm__prompt'

def setup_inputs():

    _w = (lambda a: (lambda t: t.to(torch.bfloat16) if t.is_floating_point() else t)(torch.as_tensor(a)))
    B, C, H, W = 2, 640, 2048, 32
    return {
        "x": _w(abs((lambda *s: torch.randn(*s, dtype=torch.bfloat16) * 0.05)(B, C, H, W))),
        "g": _w((lambda *s: torch.randn(*s, dtype=torch.bfloat16) * 0.05)(C) + 1.0),
        "b": _w((lambda *s: torch.randn(*s, dtype=torch.bfloat16) * 0.4)(C)),
    }

def reference(x, g, b):
    mu = x.mean(axis=(-2, -1), keepdims=True)
    var = ((x - mu) ** 2).mean(axis=(-2, -1), keepdims=True)
    xhat = (x - mu) / torch.sqrt(var + 1e-5)
    return xhat * g.reshape(1, -1, 1, 1) + b.reshape(1, -1, 1, 1)
```

```python
import sys

HEADER = """; Kernarg layout for this problem (48 bytes, ptrs only, base s[0:1]):
"""

def gen(threads=1024, ldflags="", stflags=""):
    NW = threads // 64
    NL = 128 * 1024 // (threads * 16)
    ND = NL * 4
    wave_bytes = NL * 1024
    L = []
    A = L.append
    A(HEADER.rstrip())
    A(f"; @launch grid=(1280,1,1) block=({threads},1,1) lds=256")
    A('.amdgcn_target "amdgcn-amd-amdhsa--gfx950"')
    A(".text")
    A(".globl standalone__instancenorm__prompt_kernel")
    A(".p2align 8")
    A(".type standalone__instancenorm__prompt_kernel,@function")
    A("standalone__instancenorm__prompt_kernel:")
    D0 = 32
    A("    s_cmp_ge_u32 s2, 1280")
    A("    s_cbranch_scc1 L_end")
    A("    s_load_dwordx4 s[4:7], s[0:1], 0")
    A("    s_load_dwordx4 s[8:11], s[0:1], 16")
    A("    s_sub_u32 s12, s2, 640")
    A("    s_cmp_ge_u32 s2, 640")
    A("    s_cselect_b32 s12, s12, s2")
    A("    s_lshl_b32 s13, s12, 1")
    A("    s_and_b32 s13, s13, 0xfffffffc")
    A("    v_lshrrev_b32 v2, 6, v0")
    A("    v_and_b32 v3, 63, v0")
    A(f"    v_mul_u32_u24 v1, {wave_bytes}, v2")
    A("    v_lshl_add_u32 v1, v3, 4, v1")
    A("    v_lshlrev_b32 v2, 2, v2")
    A("    v_mov_b32 v3, 0")
    A("    v_mov_b32 v4, 0x3f803f80")
    A("    s_lshl_b32 s14, s2, 17")
    A("    s_mov_b32 s27, 0xffff0000")
    A("    s_mov_b32 s28, 0")
    A("    s_mov_b32 s29, 0x80000000")
    A("    s_waitcnt lgkmcnt(0)")
    A("    s_add_u32 s16, s4, s14")
    A("    s_addc_u32 s17, s5, 0")
    A("    s_and_b32 s17, s17, 0xffff")
    A("    s_mov_b32 s18, 131072")
    A("    s_mov_b32 s19, 0x00020000")
    A("    s_add_u32 s20, s10, s14")
    A("    s_addc_u32 s21, s11, 0")
    A("    s_and_b32 s21, s21, 0xffff")
    A("    s_mov_b32 s22, 131072")
    A("    s_mov_b32 s23, 0x00020000")
    nso = (NL + 3) // 4
    for k in range(1, nso):
        A(f"    s_mov_b32 s{32+k}, {4096*k}")
    def soff(j):
        k = j // 4
        return "0" if k == 0 else f"s{32+k}"
    for j in range(NL):
        A(f"    buffer_load_dwordx4 v[{D0+4*j}:{D0+4*j+3}], v1, s[16:19], {soff(j)} offen offset:{(j%4)*1024} {ldflags}".rstrip())
    A("    s_load_dword s24, s[6:7], s13")
    A("    s_load_dword s25, s[8:9], s13")
    for a in range(4):
        A(f"    v_mov_b32 v{6+a}, 0")
    for j in range(NL):
        A(f"    s_waitcnt vmcnt({min(NL-1-j, 63)})")
        for k in range(4):
            A(f"    v_dot2c_f32_bf16 v{6+k}, v{D0+4*j+k}, v4")
    A("    s_nop 2")
    A("    v_add_f32 v6, v6, v7")
    A("    v_add_f32 v8, v8, v9")
    A("    v_add_f32 v6, v6, v8")

    def wg_reduce(acc, ldsoff):
        for ctl in ["row_shr:1 row_mask:0xf bank_mask:0xf bound_ctrl:0",
                    "row_shr:2 row_mask:0xf bank_mask:0xf bound_ctrl:0",
                    "row_shr:4 row_mask:0xf bank_mask:0xf bound_ctrl:0",
                    "row_shr:8 row_mask:0xf bank_mask:0xf bound_ctrl:0",
                    "row_bcast:15 row_mask:0xa bank_mask:0xf",
                    "row_bcast:31 row_mask:0xc bank_mask:0xf"]:
            A("    s_nop 1")
            A(f"    v_add_f32_dpp v{acc}, v{acc}, v{acc} {ctl}")
        A("    s_mov_b64 exec, s[28:29]")
        A(f"    ds_write_b32 v2, v{acc} offset:{ldsoff}")
        A("    s_mov_b64 exec, -1")
        A("    s_waitcnt lgkmcnt(0)")
        A("    s_barrier")
        for q in range(NW // 4):
            A(f"    ds_read_b128 v[{16+4*q}:{16+4*q+3}], v3 offset:{ldsoff+16*q}")
        A("    s_waitcnt lgkmcnt(0)")
        n = NW
        while n > 2:
            h = n // 2
            for p in range(0, h, 2):
                A(f"    v_pk_add_f32 v[{16+p}:{16+p+1}], v[{16+p}:{16+p+1}], v[{16+h+p}:{16+h+p+1}]")
            n = h
        A("    v_add_f32 v16, v16, v17")

    wg_reduce(6, 0)
    A("    v_mul_f32 v10, 0x37800000, v16")
    for a in range(4):
        A(f"    v_mov_b32 v{6+a}, 0")
    for i in range(ND):
        t = 16 + 2 * (i % 8)
        acc = 6 + 2 * (i % 2)
        A(f"    v_lshlrev_b32 v{t}, 16, v{D0+i}")
        A(f"    v_and_b32 v{t+1}, s27, v{D0+i}")
        A(f"    v_pk_add_f32 v[{t}:{t+1}], v[{t}:{t+1}], v[10:11] op_sel_hi:[1,0] neg_lo:[0,1] neg_hi:[0,1]")
        A(f"    v_pk_fma_f32 v[{acc}:{acc+1}], v[{t}:{t+1}], v[{t}:{t+1}], v[{acc}:{acc+1}]")
    A("    v_pk_add_f32 v[6:7], v[6:7], v[8:9]")
    A("    v_add_f32 v6, v6, v7")
    wg_reduce(6, 128)
    A("    v_mov_b32 v17, 0x3727c5ac")
    A("    v_fmac_f32 v17, 0x37800000, v16")
    A("    v_rsq_f32 v17, v17")
    A("    s_and_b32 s30, s12, 1")
    A("    s_lshl_b32 s31, s24, 16")
    A("    s_and_b32 s24, s24, s27")
    A("    s_cmp_eq_u32 s30, 1")
    A("    s_cselect_b32 s24, s24, s31")
    A("    s_lshl_b32 s31, s25, 16")
    A("    s_and_b32 s25, s25, s27")
    A("    s_cmp_eq_u32 s30, 1")
    A("    s_cselect_b32 s25, s25, s31")
    A("    v_mul_f32 v12, s24, v17")
    A("    v_mov_b32 v14, s25")
    A("    v_fma_f32 v14, -v10, v12, v14")
    for j in range(NL):
        for k in range(4):
            i = 4 * j + k
            t = 16 + 2 * (i % 8)
            A(f"    v_lshlrev_b32 v{t}, 16, v{D0+i}")
            A(f"    v_and_b32 v{t+1}, s27, v{D0+i}")
            A(f"    v_pk_fma_f32 v[{t}:{t+1}], v[{t}:{t+1}], v[12:13], v[14:15] op_sel_hi:[1,0,0]")
            A(f"    v_cvt_pk_bf16_f32 v{D0+i}, v{t}, v{t+1}")
        A(f"    buffer_store_dwordx4 v[{D0+4*j}:{D0+4*j+3}], v1, s[20:23], {soff(j)} offen offset:{(j%4)*1024} {stflags}".rstrip())
    A("L_end:")
    A("    s_endpgm")
    nv = D0 + ND
    A('.section .rodata,"a"')
    A(".p2align 6")
    A(".amdhsa_kernel standalone__instancenorm__prompt_kernel")
    A(f"  .amdhsa_next_free_vgpr {nv}")
    A("  .amdhsa_next_free_sgpr 48")
    A(f"  .amdhsa_accum_offset {(nv+3)//4*4}")
    A("  .amdhsa_group_segment_fixed_size 0")
    A("  .amdhsa_kernarg_size 48")
    A("  .amdhsa_user_sgpr_count 2")
    A("  .amdhsa_user_sgpr_kernarg_segment_ptr 1")
    A("  .amdhsa_system_sgpr_workgroup_id_x 1")
    A("  .amdhsa_float_denorm_mode_32 3")
    A(".end_amdhsa_kernel")
    return "\n".join(L) + "\n"

if __name__ == "__main__":
    out = sys.argv[1]
    threads = int(sys.argv[2]) if len(sys.argv) > 2 else 1024
    ld = sys.argv[3] if len(sys.argv) > 3 else ""
    st = sys.argv[4] if len(sys.argv) > 4 else ""
    open(out, "w").write(gen(threads, ld, st))
```

```python
import sys

HEADER = """; Kernarg layout for this problem (48 bytes, ptrs only, base s[0:1]):
"""

def gen(threads=1024, grid=256, nb=3, ld="nt", st="", mode="", order="strided"):
    NW = threads // 64
    NL = 128 * 1024 // (threads * 16)
    ND = NL * 4
    wave_bytes = NL * 1024
    CNT = 1280 // grid
    assert CNT * grid == 1280
    nso = (NL + 3) // 4
    L = []
    A = L.append
    A(HEADER.rstrip())
    A(f"; @launch grid=({grid},1,1) block=({threads},1,1) lds={CNT*2*64 if CNT*2*64>256 else 256}")
    A('.amdgcn_target "amdgcn-amd-amdhsa--gfx950"')
    A(".text")
    A(".globl standalone__instancenorm__prompt_kernel")
    A(".p2align 8")
    A(".type standalone__instancenorm__prompt_kernel,@function")
    A("standalone__instancenorm__prompt_kernel:")
    D0 = 32
    SOFF = 32
    SG = SOFF + CNT * nso
    SB = SG + CNT
    SC = SB + CNT
    SEND = SC + CNT
    assert SEND <= 100
    A(f"    s_cmp_ge_u32 s2, {grid}")
    A("    s_cbranch_scc1 L_end")
    A("    s_load_dwordx4 s[4:7], s[0:1], 0")
    A("    s_load_dwordx4 s[8:11], s[0:1], 16")
    A("    v_lshrrev_b32 v2, 6, v0")
    A("    v_and_b32 v3, 63, v0")
    A(f"    v_mul_u32_u24 v1, {wave_bytes}, v2")
    A("    v_lshl_add_u32 v1, v3, 4, v1")
    A("    v_lshlrev_b32 v2, 2, v2")
    A("    v_mov_b32 v3, 0")
    A("    v_mov_b32 v4, 0x3f803f80")
    A("    s_mov_b32 s27, 0xffff0000")
    A("    s_mov_b32 s28, 0")
    A("    s_mov_b32 s29, 0x80000000")
    if order == "strided":
        A("    s_mov_b32 s12, s2")
        step = grid
    else:
        A(f"    s_mul_i32 s12, s2, {CNT}")
        step = 1
    for i in range(CNT):
        A(f"    s_lshl_b32 s{SOFF+i*nso}, s12, 17")
        for k in range(1, nso):
            A(f"    s_add_u32 s{SOFF+i*nso+k}, s{SOFF+i*nso}, {4096*k}")
        A(f"    s_sub_u32 s13, s12, 640")
        A(f"    s_cmp_ge_u32 s12, 640")
        A(f"    s_cselect_b32 s{SC+i}, s13, s12")
        if i != CNT - 1:
            A(f"    s_add_u32 s12, s12, {step}")
    A("    s_waitcnt lgkmcnt(0)")
    A("    s_mov_b32 s16, s4")
    A("    s_and_b32 s17, s5, 0xffff")
    A("    s_mov_b32 s18, 167772160")
    A("    s_mov_b32 s19, 0x00020000")
    A("    s_mov_b32 s20, s10")
    A("    s_and_b32 s21, s11, 0xffff")
    A("    s_mov_b32 s22, 167772160")
    A("    s_mov_b32 s23, 0x00020000")

    issued = []
    def loads(i):
        b = D0 + (i % nb) * ND
        for j in range(NL):
            if "W" not in mode:
                A(f"    buffer_load_dwordx4 v[{b+4*j}:{b+4*j+3}], v1, s[16:19], s{SOFF+i*nso+j//4} offen offset:{(j%4)*1024} {ld}".rstrip())
                issued.append(("L", i, j))
    for i in range(min(nb, CNT)):
        loads(i)
    for i in range(CNT):
        A(f"    s_lshl_b32 s13, s{SC+i}, 1")
        A(f"    s_and_b32 s13, s13, 0xfffffffc")
        A(f"    s_load_dword s{SG+i}, s[6:7], s13")
        A(f"    s_load_dword s{SB+i}, s[8:9], s13")

    def wg_reduce(acc, ldsoff):
        for ctl in ["row_shr:1 row_mask:0xf bank_mask:0xf bound_ctrl:0",
                    "row_shr:2 row_mask:0xf bank_mask:0xf bound_ctrl:0",
                    "row_shr:4 row_mask:0xf bank_mask:0xf bound_ctrl:0",
                    "row_shr:8 row_mask:0xf bank_mask:0xf bound_ctrl:0",
                    "row_bcast:15 row_mask:0xa bank_mask:0xf",
                    "row_bcast:31 row_mask:0xc bank_mask:0xf"]:
            A("    s_nop 1")
            A(f"    v_add_f32_dpp v{acc}, v{acc}, v{acc} {ctl}")
        A("    s_mov_b64 exec, s[28:29]")
        A(f"    ds_write_b32 v2, v{acc} offset:{ldsoff}")
        A("    s_mov_b64 exec, -1")
        A("    s_waitcnt lgkmcnt(0)")
        A("    s_barrier")
        for q in range(NW // 4):
            A(f"    ds_read_b128 v[{16+4*q}:{16+4*q+3}], v3 offset:{ldsoff+16*q}")
        A("    s_waitcnt lgkmcnt(0)")
        n = NW
        while n > 2:
            h = n // 2
            for p in range(0, h, 2):
                A(f"    v_pk_add_f32 v[{16+p}:{16+p+1}], v[{16+p}:{16+p+1}], v[{16+h+p}:{16+h+p+1}]")
            n = h
        A("    v_add_f32 v16, v16, v17")

    for i in range(CNT):
        b = D0 + (i % nb) * ND
        A(f"    ; ---- instance {i}")
        for a in range(4):
            A(f"    v_mov_b32 v{6+a}, 0")
        for j in range(NL):
            if "W" not in mode:
                pos = issued.index(("L", i, j))
                n = len(issued) - 1 - pos
                assert n <= 63
                A(f"    s_waitcnt vmcnt({n})")
            for k in range(4):
                A(f"    v_dot2c_f32_bf16 v{6+k}, v{b+4*j+k}, v4")
        A("    s_nop 2")
        A("    v_add_f32 v6, v6, v7")
        A("    v_add_f32 v8, v8, v9")
        A("    v_add_f32 v6, v6, v8")
        wg_reduce(6, i * 128)
        A("    v_mul_f32 v10, 0x37800000, v16")
        for a in range(4):
            A(f"    v_mov_b32 v{6+a}, 0")
        for r in range(ND):
            t = 16 + 2 * (r % 8)
            acc = 6 + 2 * (r % 2)
            A(f"    v_lshlrev_b32 v{t}, 16, v{b+r}")
            A(f"    v_and_b32 v{t+1}, s27, v{b+r}")
            A(f"    v_pk_add_f32 v[{t}:{t+1}], v[{t}:{t+1}], v[10:11] op_sel_hi:[1,0] neg_lo:[0,1] neg_hi:[0,1]")
            A(f"    v_pk_fma_f32 v[{acc}:{acc+1}], v[{t}:{t+1}], v[{t}:{t+1}], v[{acc}:{acc+1}]")
        A("    v_pk_add_f32 v[6:7], v[6:7], v[8:9]")
        A("    v_add_f32 v6, v6, v7")
        wg_reduce(6, i * 128 + 64)
        A("    v_mov_b32 v17, 0x3727c5ac")
        A("    v_fmac_f32 v17, 0x37800000, v16")
        A("    v_rsq_f32 v17, v17")
        A(f"    s_and_b32 s30, s{SC+i}, 1")
        A(f"    s_lshl_b32 s31, s{SG+i}, 16")
        A(f"    s_and_b32 s24, s{SG+i}, s27")
        A("    s_cmp_eq_u32 s30, 1")
        A("    s_cselect_b32 s24, s24, s31")
        A(f"    s_lshl_b32 s31, s{SB+i}, 16")
        A(f"    s_and_b32 s25, s{SB+i}, s27")
        A("    s_cmp_eq_u32 s30, 1")
        A("    s_cselect_b32 s25, s25, s31")
        A("    v_mul_f32 v12, s24, v17")
        A("    v_mov_b32 v14, s25")
        A("    v_fma_f32 v14, -v10, v12, v14")
        for j in range(NL):
            for k in range(4):
                r = 4 * j + k
                t = 16 + 2 * (r % 8)
                A(f"    v_lshlrev_b32 v{t}, 16, v{b+r}")
                A(f"    v_and_b32 v{t+1}, s27, v{b+r}")
                A(f"    v_pk_fma_f32 v[{t}:{t+1}], v[{t}:{t+1}], v[12:13], v[14:15] op_sel_hi:[1,0,0]")
                A(f"    v_cvt_pk_bf16_f32 v{b+r}, v{t}, v{t+1}")
            if "R" not in mode or j == 0:
                A(f"    buffer_store_dwordx4 v[{b+4*j}:{b+4*j+3}], v1, s[20:23], s{SOFF+i*nso+j//4} offen offset:{(j%4)*1024} {st}".rstrip())
                issued.append(("S", i, j))
        if i + nb < CNT:
            A("    s_nop 1")
            loads(i + nb)
    A("L_end:")
    A("    s_endpgm")
    nv = D0 + ND * nb
    A('.section .rodata,"a"')
    A(".p2align 6")
    A(".amdhsa_kernel standalone__instancenorm__prompt_kernel")
    A(f"  .amdhsa_next_free_vgpr {nv}")
    A(f"  .amdhsa_next_free_sgpr {max(SEND,48)}")
    A(f"  .amdhsa_accum_offset {(nv+3)//4*4}")
    A("  .amdhsa_group_segment_fixed_size 0")
    A("  .amdhsa_kernarg_size 48")
    A("  .amdhsa_user_sgpr_count 2")
    A("  .amdhsa_user_sgpr_kernarg_segment_ptr 1")
    A("  .amdhsa_system_sgpr_workgroup_id_x 1")
    A("  .amdhsa_float_denorm_mode_32 3")
    A(".end_amdhsa_kernel")
    return "\n".join(L) + "\n"

if __name__ == "__main__":
    out = sys.argv[1]
    kw = {}
    for a in sys.argv[2:]:
        k, v = a.split("=", 1)
        kw[k] = int(v) if k in ("threads", "grid", "nb") else v
    open(out, "w").write(gen(**kw))
```

```python
import sys

HEADER = """; Kernarg layout for this problem (48 bytes, ptrs only, base s[0:1]):
"""

def gen(F=96, ld="nt", st="", mode="", mimic=1, stag=0, w1=4, sb=0):
    threads, grid, nb = 1024, 256, 3
    NW, NL, ND = 16, 8, 32
    wave_bytes = NL * 1024
    CNT = 6
    nso = 2
    T = "T" in mode
    L = []
    A = L.append
    A(HEADER.rstrip())
    A(f"; @launch grid=({grid},1,1) block=({threads},1,1) lds={CNT*256}")
    A('.amdgcn_target "amdgcn-amd-amdhsa--gfx950"')
    A(".text")
    A(".globl standalone__instancenorm__prompt_kernel")
    A(".p2align 8")
    A(".type standalone__instancenorm__prompt_kernel,@function")
    A("standalone__instancenorm__prompt_kernel:")
    D0 = 32
    SOFF = 32
    SG = 44
    SB = 50
    SC = 56
    S_WAVE = 62
    S_TK = 63
    S_V4 = 64
    S_V5 = 65
    S_E0 = 66
    S_E1 = 67
    S_G0 = 68
    S_G1 = 69
    STAMP = 70
    A(f"    s_cmp_ge_u32 s2, {grid}")
    A("    s_cbranch_scc1 L_end")
    if T:
        A(f"    s_memrealtime s[{STAMP}:{STAMP+1}]")
        A("    s_load_dwordx2 s[88:89], s[0:1], 40")
        for q in range(1, 9):
            A(f"    s_mov_b64 s[{STAMP+2*q}:{STAMP+2*q+1}], 0")
    A("    s_load_dwordx4 s[4:7], s[0:1], 0")
    A("    s_load_dwordx4 s[8:11], s[0:1], 16")
    A("    s_load_dwordx2 s[12:13], s[0:1], 32")
    A("    v_lshrrev_b32 v2, 6, v0")
    A("    v_and_b32 v3, 63, v0")
    A(f"    v_mul_u32_u24 v1, {wave_bytes}, v2")
    A("    v_lshl_add_u32 v1, v3, 4, v1")
    A(f"    v_readfirstlane_b32 s{S_WAVE}, v2")
    A("    v_lshlrev_b32 v2, 2, v2")
    A("    v_mov_b32 v3, 0")
    A("    v_mov_b32 v4, 0x3f803f80")
    A("    s_mov_b32 s27, 0xffff0000")
    A("    s_mov_b32 s28, 0")
    A("    s_mov_b32 s29, 0x80000000")
    A(f"    s_mov_b32 s{S_E0}, 0x00003f80")
    A(f"    s_mov_b32 s{S_E1}, 0x3f800000")
    A(f"    s_mov_b32 s{S_TK}, 0xffff")
    A("    s_mov_b32 s14, s2")
    for k in range(4):
        A(f"    s_lshl_b32 s{SOFF+2*k}, s14, 17")
        A(f"    s_add_u32 s{SOFF+2*k+1}, s{SOFF+2*k}, 4096")
        A(f"    s_sub_u32 s15, s14, 640")
        A(f"    s_cmp_ge_u32 s14, 640")
        A(f"    s_cselect_b32 s{SC+k}, s15, s14")
        if k != 3:
            A(f"    s_add_u32 s14, s14, {grid}")
    A("    s_waitcnt lgkmcnt(0)")
    A("    s_mov_b32 s16, s4")
    A("    s_and_b32 s17, s5, 0xffff")
    A("    s_mov_b32 s18, 167772160")
    A("    s_mov_b32 s19, 0x00020000")
    A("    s_mov_b32 s20, s10")
    A("    s_and_b32 s21, s11, 0xffff")
    A("    s_mov_b32 s22, 167772160")
    A("    s_mov_b32 s23, 0x00020000")

    issued = []
    def loads(k):
        b = D0 + (k % nb) * ND
        for j in range(NL):
            A(f"    buffer_load_dwordx4 v[{b+4*j}:{b+4*j+3}], v1, s[16:19], s{SOFF+2*k+j//4} offen offset:{(j%4)*1024} {ld}".rstrip())
            issued.append(("L", k, j))
    def gb_load(k):
        A(f"    s_lshl_b32 s15, s{SC+k}, 1")
        A(f"    s_and_b32 s15, s15, 0xfffffffc")
        A(f"    s_load_dword s{SG+k}, s[6:7], s15")
        A(f"    s_load_dword s{SB+k}, s[8:9], s15")
    if stag:
        loads(0)
        for k in range(4):
            gb_load(k)
        if stag == 1:
            A(f"    s_waitcnt vmcnt({w1})")
        else:
            A("    s_barrier")
        loads(1)
    else:
        for k in range(3):
            loads(k)
        for k in range(4):
            gb_load(k)

    def wave_reduce(acc):
        for ctl in ["row_shr:1 row_mask:0xf bank_mask:0xf bound_ctrl:0",
                    "row_shr:2 row_mask:0xf bank_mask:0xf bound_ctrl:0",
                    "row_shr:4 row_mask:0xf bank_mask:0xf bound_ctrl:0",
                    "row_shr:8 row_mask:0xf bank_mask:0xf bound_ctrl:0",
                    "row_bcast:15 row_mask:0xa bank_mask:0xf",
                    "row_bcast:31 row_mask:0xc bank_mask:0xf"]:
            A("    s_nop 1")
            A(f"    v_add_f32_dpp v{acc}, v{acc}, v{acc} {ctl}")

    def wg_reduce(acc, ldsoff, ticket=False):
        wave_reduce(acc)
        A("    s_mov_b64 exec, s[28:29]")
        A(f"    ds_write_b32 v2, v{acc} offset:{ldsoff}")
        if ticket:
            A("    s_waitcnt lgkmcnt(0)")
            A(f"    v_mov_b32 v7, s{S_TK}")
            A(f"    ds_write_b32 v2, v7 offset:{ldsoff+128}")
        A("    s_mov_b64 exec, -1")
        A("    s_waitcnt lgkmcnt(0)")
        A("    s_barrier")
        for q in range(NW // 4):
            A(f"    ds_read_b128 v[{16+4*q}:{16+4*q+3}], v3 offset:{ldsoff+16*q}")
        if ticket:
            A(f"    ds_read_b32 v7, v3 offset:{ldsoff+128}")
        A("    s_waitcnt lgkmcnt(0)")
        if ticket:
            A(f"    v_readfirstlane_b32 s24, v7")
        n = NW
        while n > 2:
            h = n // 2
            for p in range(0, h, 2):
                A(f"    v_pk_add_f32 v[{16+p}:{16+p+1}], v[{16+p}:{16+p+1}], v[{16+h+p}:{16+h+p+1}]")
            n = h
        A("    v_add_f32 v16, v16, v17")

    def rnd_bf16(v):
        A(f"    v_cvt_pk_bf16_f32 v{v}, v{v}, v{v}")
        A(f"    v_and_b32 v{v}, s27, v{v}")

    for k in range(CNT):
        b = D0 + (k % nb) * ND
        A(f"    ; ---- iteration {k}")
        for a in range(4):
            A(f"    v_mov_b32 v{6+a}, 0")
        for j in range(NL):
            pos = issued.index(("L", k, j))
            n = len(issued) - 1 - pos
            assert n <= 63
            A(f"    s_waitcnt vmcnt({n})")
            for q in range(4):
                A(f"    v_dot2c_f32_bf16 v{6+q}, v{b+4*j+q}, v4")
        if stag == 1 and k == 0:
            loads(2)
        A("    s_nop 2")
        A("    v_add_f32 v6, v6, v7")
        A("    v_add_f32 v8, v8, v9")
        A("    v_add_f32 v6, v6, v8")
        tk = k in (2, 3)
        wg_reduce(6, k * 256, ticket=tk)
        if stag == 2 and k == 0:
            loads(2)
        if tk:
            kk = k + 2
            lim = 256 - F if k == 2 else F
            base = 1024 if k == 2 else 1024 + 256 - F
            vflag = S_V4 if k == 2 else S_V5
            A(f"    s_add_u32 s25, s24, {base}")
            A(f"    s_cmp_lt_u32 s24, {lim}")
            A(f"    s_cselect_b32 s{vflag}, 1, 0")
            A(f"    s_cselect_b32 s25, s25, 1279")
            A(f"    s_lshl_b32 s26, s25, 17")
            A(f"    s_cmp_lt_u32 s24, {lim}")
            A(f"    s_cselect_b32 s{SOFF+2*kk}, s26, 0x80000000")
            A(f"    s_add_u32 s{SOFF+2*kk+1}, s{SOFF+2*kk}, 4096")
            A(f"    s_sub_u32 s{SC+kk}, s25, 640")
            A(f"    s_mov_b32 s{S_TK}, 0xffff")
            loads(kk)
            gb_load(kk)
        A("    v_mul_f32 v10, 0x37800000, v16")
        rnd_bf16(10)
        A("    v_xor_b32 v10, 0x80000000, v10")
        for a in range(4):
            A(f"    v_mov_b32 v{6+a}, 0")
        if mimic:
            for j in range(NL):
                for q in range(4):
                    r = b + 4 * j + q
                    A(f"    v_dot2_f32_bf16 v{16+2*q}, v{r}, s{S_E0}, v10")
                    A(f"    v_dot2_f32_bf16 v{17+2*q}, v{r}, s{S_E1}, v10")
                for q in range(4):
                    r = b + 4 * j + q
                    A(f"    v_cvt_pk_bf16_f32 v{r}, v{16+2*q}, v{17+2*q}")
                for q in range(4):
                    r = b + 4 * j + q
                    A(f"    v_dot2c_f32_bf16 v{6+q}, v{r}, v{r}")
            A("    s_nop 2")
            A("    v_add_f32 v6, v6, v7")
            A("    v_add_f32 v8, v8, v9")
            A("    v_add_f32 v6, v6, v8")
        else:
            for r in range(ND):
                t = 16 + 2 * (r % 8)
                acc = 6 + 2 * (r % 2)
                A(f"    v_lshlrev_b32 v{t}, 16, v{b+r}")
                A(f"    v_and_b32 v{t+1}, s27, v{b+r}")
                A(f"    v_pk_add_f32 v[{t}:{t+1}], v[{t}:{t+1}], v[10:11] op_sel_hi:[1,0]")
                A(f"    v_pk_fma_f32 v[{acc}:{acc+1}], v[{t}:{t+1}], v[{t}:{t+1}], v[{acc}:{acc+1}]")
            A("    v_pk_add_f32 v[6:7], v[6:7], v[8:9]")
            A("    v_add_f32 v6, v6, v7")
        wg_reduce(6, k * 256 + 64)
        if k in (1, 2):
            A(f"    s_cmp_lg_u32 s{S_WAVE}, 0")
            A(f"    s_cbranch_scc1 L_notk{k}")
            if k == 2:
                A(f"    s_cmp_eq_u32 s{S_V4}, 0")
                A(f"    s_cbranch_scc1 L_notk{k}")
            A(f"    s_mov_b32 s{S_TK}, 1")
            A(f"    s_atomic_add s{S_TK}, s[12:13], {(k-1)*64} glc")
            A(f"L_notk{k}:")
        A(f"    s_and_b32 s30, s{SC+k}, 1")
        A(f"    s_lshl_b32 s31, s{SG+k}, 16")
        A(f"    s_and_b32 s24, s{SG+k}, s27")
        A("    s_cmp_eq_u32 s30, 1")
        A("    s_cselect_b32 s24, s24, s31")
        A(f"    s_lshl_b32 s31, s{SB+k}, 16")
        A(f"    s_and_b32 s25, s{SB+k}, s27")
        A("    s_cmp_eq_u32 s30, 1")
        A("    s_cselect_b32 s25, s25, s31")
        if mimic:
            A(f"    s_mov_b32 s{S_G1}, s24")
            A(f"    s_lshr_b32 s{S_G0}, s24, 16")
            A("    v_mul_f32 v17, 0x37800000, v16")
            rnd_bf16(17)
            A("    v_add_f32 v17, 0x3727c5ac, v17")
            rnd_bf16(17)
            A("    v_sqrt_f32 v17, v17")
            A("    s_nop 0")
            rnd_bf16(17)
            A("    v_rcp_f32 v12, v17")
            A("    s_nop 0")
            A("    v_fma_f32 v18, -v17, v12, 1.0")
            A("    v_fma_f32 v12, v18, v12, v12")
            A("    v_mov_b32 v13, s25")
            for j in range(NL):
                for q in range(4):
                    r = b + 4 * j + q
                    A(f"    v_lshlrev_b32 v{16+2*q}, 16, v{r}")
                    A(f"    v_and_b32 v{17+2*q}, s27, v{r}")
                for q in range(4):
                    A(f"    v_pk_mul_f32 v[{16+2*q}:{17+2*q}], v[{16+2*q}:{17+2*q}], v[12:13] op_sel_hi:[1,0]")
                for q in range(4):
                    A(f"    v_cvt_pk_bf16_f32 v{24+q}, v{16+2*q}, v{17+2*q}")
                for q in range(4):
                    A(f"    v_dot2_f32_bf16 v{16+2*q}, v{24+q}, s{S_G0}, 0")
                    A(f"    v_dot2_f32_bf16 v{17+2*q}, v{24+q}, s{S_G1}, 0")
                for q in range(4):
                    A(f"    v_cvt_pk_bf16_f32 v{24+q}, v{16+2*q}, v{17+2*q}")
                for q in range(4):
                    A(f"    v_dot2_f32_bf16 v{16+2*q}, v{24+q}, s{S_E0}, v13")
                    A(f"    v_dot2_f32_bf16 v{17+2*q}, v{24+q}, s{S_E1}, v13")
                for q in range(4):
                    r = b + 4 * j + q
                    A(f"    v_cvt_pk_bf16_f32 v{r}, v{16+2*q}, v{17+2*q}")
                if not sb:
                    A(f"    buffer_store_dwordx4 v[{b+4*j}:{b+4*j+3}], v1, s[20:23], s{SOFF+2*k+j//4} offen offset:{(j%4)*1024} {st}".rstrip())
                    issued.append(("S", k, j))
        else:
            A("    v_mul_f32 v17, 0x37800000, v16")
            rnd_bf16(17)
            A("    v_add_f32 v17, 0x3727c5ac, v17")
            rnd_bf16(17)
            A("    v_sqrt_f32 v17, v17")
            A("    s_nop 0")
            rnd_bf16(17)
            A("    v_rcp_f32 v12, v17")
            A("    s_nop 0")
            A("    v_fma_f32 v18, -v17, v12, 1.0")
            A("    v_fma_f32 v12, v18, v12, v12")
            A("    v_mul_f32 v12, s24, v12")
            A("    v_mov_b32 v14, s25")
            A("    v_fma_f32 v14, v10, v12, v14")
            for j in range(NL):
                for q in range(4):
                    r = 4 * j + q
                    t = 16 + 2 * (r % 8)
                    A(f"    v_lshlrev_b32 v{t}, 16, v{b+r}")
                    A(f"    v_and_b32 v{t+1}, s27, v{b+r}")
                    A(f"    v_pk_fma_f32 v[{t}:{t+1}], v[{t}:{t+1}], v[12:13], v[14:15] op_sel_hi:[1,0,0]")
                    A(f"    v_cvt_pk_bf16_f32 v{b+r}, v{t}, v{t+1}")
                if not sb:
                    A(f"    buffer_store_dwordx4 v[{b+4*j}:{b+4*j+3}], v1, s[20:23], s{SOFF+2*k+j//4} offen offset:{(j%4)*1024} {st}".rstrip())
                    issued.append(("S", k, j))
        if sb == 2:
            A("    s_barrier")
        if sb:
            for j in range(NL):
                A(f"    buffer_store_dwordx4 v[{b+4*j}:{b+4*j+3}], v1, s[20:23], s{SOFF+2*k+j//4} offen offset:{(j%4)*1024} {st}".rstrip())
                issued.append(("S", k, j))
        if T:
            A(f"    s_memrealtime s[{STAMP+2+2*k}:{STAMP+3+2*k}]")
        if k == 0:
            A("    s_nop 1")
            loads(3)
        if k == 3:
            A(f"    s_cmp_eq_u32 s{S_V4}, 0")
            A("    s_cbranch_scc1 L_fin")
        if k == 4:
            A(f"    s_cmp_eq_u32 s{S_V5}, 0")
            A("    s_cbranch_scc1 L_fin")
    A("L_fin:")
    if T:
        A("    s_waitcnt vmcnt(0)")
        A(f"    s_memrealtime s[{STAMP+14}:{STAMP+15}]")
        A("    s_waitcnt lgkmcnt(0)")
        A("    v_cmp_eq_u32 vcc, 0, v0")
        A("    s_and_saveexec_b64 s[30:31], vcc")
        A("    s_cbranch_execz L_end")
        A("    s_lshl_b32 s14, s2, 7")
        A("    s_add_u32 s88, s88, s14")
        A("    s_addc_u32 s89, s89, 0")
        A("    v_mov_b32 v5, 0")
        for q in range(8):
            A(f"    v_mov_b32 v6, s{STAMP+2*q}")
            A(f"    global_store_dword v5, v6, s[88:89] offset:{4*q}")
        A("    s_getreg_b32 s14, hwreg(HW_REG_XCC_ID)")
        A("    v_mov_b32 v6, s14")
        A(f"    global_store_dword v5, v6, s[88:89] offset:32")
        A(f"    s_add_u32 s14, s{S_V4}, s{S_V5}")
        A("    v_mov_b32 v6, s14")
        A(f"    global_store_dword v5, v6, s[88:89] offset:36")
    A("L_end:")
    A("    s_endpgm")
    nv = D0 + ND * nb
    A('.section .rodata,"a"')
    A(".p2align 6")
    A(".amdhsa_kernel standalone__instancenorm__prompt_kernel")
    A(f"  .amdhsa_next_free_vgpr {nv}")
    A(f"  .amdhsa_next_free_sgpr {96 if T else 72}")
    A(f"  .amdhsa_accum_offset {(nv+3)//4*4}")
    A("  .amdhsa_group_segment_fixed_size 0")
    A("  .amdhsa_kernarg_size 48")
    A("  .amdhsa_user_sgpr_count 2")
    A("  .amdhsa_user_sgpr_kernarg_segment_ptr 1")
    A("  .amdhsa_system_sgpr_workgroup_id_x 1")
    A("  .amdhsa_float_denorm_mode_32 3")
    A(".end_amdhsa_kernel")
    return "\n".join(L) + "\n"

if __name__ == "__main__":
    out = sys.argv[1]
    kw = {}
    for a in sys.argv[2:]:
        k, v = a.split("=", 1)
        kw[k] = int(v) if k in ("F", "mimic", "stag", "w1", "sb") else v
    open(out, "w").write(gen(**kw))
```

```python
import sys

HEADER = """; Kernarg layout for this problem (48 bytes, ptrs only, base s[0:1]):
"""

def gen(F=96, ld="nt", st="", mode="", mimic=1, stag=0, w1=4, sb=0, map=0, lp=0, tk2=0, p2d=0, safe=1):
    threads, grid, nb = 1024, 256, 3
    NW, NL, ND = 16, 8, 32
    wave_bytes = NL * 1024
    CNT = 6
    nso = 2
    T = "T" in mode
    L = []
    A = L.append
    A(HEADER.rstrip())
    A(f"; @launch grid=({grid},1,1) block=({threads},1,1) lds={CNT*256}")
    A('.amdgcn_target "amdgcn-amd-amdhsa--gfx950"')
    A(".text")
    A(".globl standalone__instancenorm__prompt_kernel")
    A(".p2align 8")
    A(".type standalone__instancenorm__prompt_kernel,@function")
    A("standalone__instancenorm__prompt_kernel:")
    D0 = 32
    SOFF = 32
    SG = 44
    SB = 50
    SC = 56
    S_WAVE = 62
    S_TK = 63
    S_V4 = 64
    S_V5 = 65
    S_E0 = 66
    S_E1 = 67
    S_G0 = 68
    S_G1 = 69
    STAMP = 70
    A(f"    s_cmp_ge_u32 s2, {grid}")
    A("    s_cbranch_scc1 L_end")
    if T:
        A(f"    s_memrealtime s[{STAMP}:{STAMP+1}]")
        A("    s_load_dwordx2 s[88:89], s[0:1], 40")
        for q in range(1, 9):
            A(f"    s_mov_b64 s[{STAMP+2*q}:{STAMP+2*q+1}], 0")
    A("    s_load_dwordx4 s[4:7], s[0:1], 0")
    A("    s_load_dwordx4 s[8:11], s[0:1], 16")
    A("    s_load_dwordx2 s[12:13], s[0:1], 32")
    A("    v_lshrrev_b32 v2, 6, v0")
    A("    v_and_b32 v3, 63, v0")
    A(f"    v_mul_u32_u24 v1, {wave_bytes if map == 0 else (1024 if map == 1 else 2048)}, v2")
    A("    v_lshl_add_u32 v1, v3, 4, v1")
    A(f"    v_readfirstlane_b32 s{S_WAVE}, v2")
    A("    v_lshlrev_b32 v2, 2, v2")
    A("    v_mov_b32 v3, 0")
    A("    v_mov_b32 v4, 0x3f803f80")
    A("    s_mov_b32 s27, 0xffff0000")
    A("    s_mov_b32 s28, 0")
    A("    s_mov_b32 s29, 0x80000000")
    A(f"    s_mov_b32 s{S_E0}, 0x00003f80")
    A(f"    s_mov_b32 s{S_E1}, 0x3f800000")
    A(f"    s_mov_b32 s{S_TK}, 0xffff")
    A("    s_mov_b32 s14, s2")
    for k in range(4):
        A(f"    s_lshl_b32 s{SOFF+2*k}, s14, 17")
        A(f"    s_add_u32 s{SOFF+2*k+1}, s{SOFF+2*k}, 4096")
        A(f"    s_sub_u32 s15, s14, 640")
        A(f"    s_cmp_ge_u32 s14, 640")
        A(f"    s_cselect_b32 s{SC+k}, s15, s14")
        if k != 3:
            A(f"    s_add_u32 s14, s14, {grid}")
    A("    s_waitcnt lgkmcnt(0)")
    A("    s_mov_b32 s16, s4")
    A("    s_and_b32 s17, s5, 0xffff")
    A("    s_mov_b32 s18, 167772160")
    A("    s_mov_b32 s19, 0x00020000")
    A("    s_mov_b32 s20, s10")
    A("    s_and_b32 s21, s11, 0xffff")
    A("    s_mov_b32 s22, 167772160")
    A("    s_mov_b32 s23, 0x00020000")
    if safe:
        A("    s_mov_b32 s92, s4")
        A("    s_and_b32 s93, s5, 0xffff")
        A("    s_mov_b32 s94, 0")
        A("    s_mov_b32 s95, 0x00020000")

    issued = []
    def addr(k, j):
        if map == 0:
            return f"s{SOFF+2*k+j//4}", (j % 4) * 1024
        if map == 1:
            if j == 0:
                return f"s{SOFF+2*k}", 0
            A(f"    s_add_u32 s{90+(j%2)}, s{SOFF+2*k}, {j*16384}")
            return f"s{90+(j%2)}", 0
        if map == 2:
            if j // 2 == 0:
                return f"s{SOFF+2*k}", (j % 2) * 1024
            if j % 2 == 0:
                A(f"    s_add_u32 s{90+((j//2)%2)}, s{SOFF+2*k}, {(j//2)*32768}")
            return f"s{90+((j//2)%2)}", (j % 2) * 1024
    def loads(k):
        b = D0 + (k % nb) * ND
        for j in range(NL):
            so, im = addr(k, j)
            srd = "s[92:95]" if (safe and k >= 4) else "s[16:19]"
            A(f"    buffer_load_dwordx4 v[{b+4*j}:{b+4*j+3}], v1, {srd}, {so} offen offset:{im} {ld}".rstrip())
            issued.append(("L", k, j))
    def gb_load(k):
        A(f"    s_lshl_b32 s15, s{SC+k}, 1")
        A(f"    s_and_b32 s15, s15, 0xfffffffc")
        A(f"    s_load_dword s{SG+k}, s[6:7], s15")
        A(f"    s_load_dword s{SB+k}, s[8:9], s15")
    if stag:
        loads(0)
        for k in range(4):
            gb_load(k)
        if stag == 1:
            A(f"    s_waitcnt vmcnt({w1})")
        else:
            A("    s_barrier")
        loads(1)
    else:
        for k in range(3):
            loads(k)
        for k in range(4):
            gb_load(k)

    def wave_reduce(acc):
        for ctl in ["row_shr:1 row_mask:0xf bank_mask:0xf bound_ctrl:0",
                    "row_shr:2 row_mask:0xf bank_mask:0xf bound_ctrl:0",
                    "row_shr:4 row_mask:0xf bank_mask:0xf bound_ctrl:0",
                    "row_shr:8 row_mask:0xf bank_mask:0xf bound_ctrl:0",
                    "row_bcast:15 row_mask:0xa bank_mask:0xf",
                    "row_bcast:31 row_mask:0xc bank_mask:0xf"]:
            A("    s_nop 1")
            A(f"    v_add_f32_dpp v{acc}, v{acc}, v{acc} {ctl}")

    def wg_reduce(acc, ldsoff, ticket=False):
        wave_reduce(acc)
        A("    s_mov_b64 exec, s[28:29]")
        A(f"    ds_write_b32 v2, v{acc} offset:{ldsoff}")
        if ticket:
            A("    s_waitcnt lgkmcnt(0)")
            A(f"    v_mov_b32 v7, s{S_TK}")
            A(f"    ds_write_b32 v2, v7 offset:{ldsoff+128}")
        A("    s_mov_b64 exec, -1")
        A("    s_waitcnt lgkmcnt(0)")
        A("    s_barrier")
        for q in range(NW // 4):
            A(f"    ds_read_b128 v[{16+4*q}:{16+4*q+3}], v3 offset:{ldsoff+16*q}")
        if ticket:
            A(f"    ds_read_b32 v7, v3 offset:{ldsoff+128}")
        A("    s_waitcnt lgkmcnt(0)")
        if ticket:
            A(f"    v_readfirstlane_b32 s24, v7")
        n = NW
        while n > 2:
            h = n // 2
            for p in range(0, h, 2):
                A(f"    v_pk_add_f32 v[{16+p}:{16+p+1}], v[{16+p}:{16+p+1}], v[{16+h+p}:{16+h+p+1}]")
            n = h
        A("    v_add_f32 v16, v16, v17")

    def rnd_bf16(v):
        A(f"    v_cvt_pk_bf16_f32 v{v}, v{v}, v{v}")
        A(f"    v_and_b32 v{v}, s27, v{v}")

    def take_ticket(k):
        A(f"    s_cmp_lg_u32 s{S_WAVE}, 0")
        A(f"    s_cbranch_scc1 L_notk{k}")
        if k == 2:
            A(f"    s_cmp_eq_u32 s{S_V4}, 0")
            A(f"    s_cbranch_scc1 L_notk{k}")
        A(f"    s_mov_b32 s{S_TK}, 1")
        A(f"    s_atomic_add s{S_TK}, s[12:13], {(k-1)*64} glc")
        A(f"L_notk{k}:")
    def decide(kk):
        first = kk == 4
        lim = 256 - F if first else F
        base = 1024 if first else 1024 + 256 - F
        vflag = S_V4 if first else S_V5
        A(f"    s_add_u32 s25, s24, {base}")
        A(f"    s_cmp_lt_u32 s24, {lim}")
        A(f"    s_cselect_b32 s{vflag}, 1, 0")
        A(f"    s_cselect_b32 s25, s25, 1279")
        A(f"    s_lshl_b32 s26, s25, 17")
        A(f"    s_cmp_lt_u32 s24, {lim}")
        A(f"    s_cselect_b32 s{SOFF+2*kk}, s26, 0x80000000")
        A(f"    s_add_u32 s{SOFF+2*kk+1}, s{SOFF+2*kk}, 4096")
        A(f"    s_sub_u32 s{SC+kk}, s25, 640")
        A(f"    s_mov_b32 s{S_TK}, 0xffff")

    for k in range(CNT):
        b = D0 + (k % nb) * ND
        A(f"    ; ---- iteration {k}")
        if tk2 == 1 and k in (1, 2):
            take_ticket(k)
        for a in range(4):
            A(f"    v_mov_b32 v{6+a}, 0")
        for j in range(NL):
            pos = issued.index(("L", k, j))
            n = len(issued) - 1 - pos
            assert n <= 63
            A(f"    s_waitcnt vmcnt({n})")
            for q in range(4):
                A(f"    v_dot2c_f32_bf16 v{6+q}, v{b+4*j+q}, v4")
        if stag == 1 and k == 0:
            loads(2)
        A("    s_nop 2")
        A("    v_add_f32 v6, v6, v7")
        A("    v_add_f32 v8, v8, v9")
        A("    v_add_f32 v6, v6, v8")
        tk = k in (2, 3) and not tk2
        wg_reduce(6, k * 256, ticket=tk)
        if tk2 == 2 and k in (1, 2):
            take_ticket(k)
        if stag == 2 and k == 0:
            loads(2)
        if lp == 1 and k == 1:
            loads(3)
        if tk:
            kk = k + 2
            lim = 256 - F if k == 2 else F
            base = 1024 if k == 2 else 1024 + 256 - F
            vflag = S_V4 if k == 2 else S_V5
            A(f"    s_add_u32 s25, s24, {base}")
            A(f"    s_cmp_lt_u32 s24, {lim}")
            A(f"    s_cselect_b32 s{vflag}, 1, 0")
            A(f"    s_cselect_b32 s25, s25, 1279")
            if safe:
                A(f"    s_cselect_b32 s94, 167772160, 0")
                A(f"    s_lshl_b32 s{SOFF+2*kk}, s25, 17")
            else:
                A(f"    s_lshl_b32 s26, s25, 17")
                A(f"    s_cmp_lt_u32 s24, {lim}")
                A(f"    s_cselect_b32 s{SOFF+2*kk}, s26, 0x80000000")
            A(f"    s_add_u32 s{SOFF+2*kk+1}, s{SOFF+2*kk}, 4096")
            A(f"    s_sub_u32 s{SC+kk}, s25, 640")
            A(f"    s_mov_b32 s{S_TK}, 0xffff")
            loads(kk)
            gb_load(kk)
            if safe and k == 3:
                A(f"    s_cmp_lg_u32 s{S_WAVE}, 0")
                A("    s_cbranch_scc1 L_nodone")
                A(f"    s_mov_b32 s{S_TK}, 1")
                A(f"    s_atomic_add s{S_TK}, s[12:13], 128 glc")
                A("L_nodone:")
        A("    v_mul_f32 v10, 0x37800000, v16")
        rnd_bf16(10)
        A("    v_xor_b32 v10, 0x80000000, v10")
        for a in range(4):
            A(f"    v_mov_b32 v{6+a}, 0")
        if mimic:
            for j in range(NL):
                for q in range(4):
                    r = b + 4 * j + q
                    A(f"    v_dot2_f32_bf16 v{16+2*q}, v{r}, s{S_E0}, v10")
                    A(f"    v_dot2_f32_bf16 v{17+2*q}, v{r}, s{S_E1}, v10")
                for q in range(4):
                    r = b + 4 * j + q
                    A(f"    v_cvt_pk_bf16_f32 v{r}, v{16+2*q}, v{17+2*q}")
                for q in range(4):
                    r = b + 4 * j + q
                    A(f"    v_dot2c_f32_bf16 v{6+q}, v{r}, v{r}")
            A("    s_nop 2")
            A("    v_add_f32 v6, v6, v7")
            A("    v_add_f32 v8, v8, v9")
            A("    v_add_f32 v6, v6, v8")
        elif p2d:
            for j in range(NL):
                for q in range(4):
                    r = b + 4 * j + q
                    t = 16 + 8 * (j % 2) + 2 * q
                    A(f"    v_dot2_f32_bf16 v{t}, v{r}, s{S_E0}, v10")
                    A(f"    v_dot2_f32_bf16 v{t+1}, v{r}, s{S_E1}, v10")
                    if j > 0:
                        tp = 16 + 8 * ((j - 1) % 2) + 2 * q
                        acc = 6 + 2 * (q % 2)
                        A(f"    v_pk_fma_f32 v[{acc}:{acc+1}], v[{tp}:{tp+1}], v[{tp}:{tp+1}], v[{acc}:{acc+1}]")
            A("    s_nop 1")
            for q in range(4):
                tp = 16 + 8 * ((NL - 1) % 2) + 2 * q
                acc = 6 + 2 * (q % 2)
                A(f"    v_pk_fma_f32 v[{acc}:{acc+1}], v[{tp}:{tp+1}], v[{tp}:{tp+1}], v[{acc}:{acc+1}]")
            A("    v_pk_add_f32 v[6:7], v[6:7], v[8:9]")
            A("    v_add_f32 v6, v6, v7")
        else:
            for r in range(ND):
                t = 16 + 2 * (r % 8)
                acc = 6 + 2 * (r % 2)
                A(f"    v_lshlrev_b32 v{t}, 16, v{b+r}")
                A(f"    v_and_b32 v{t+1}, s27, v{b+r}")
                A(f"    v_pk_add_f32 v[{t}:{t+1}], v[{t}:{t+1}], v[10:11] op_sel_hi:[1,0]")
                A(f"    v_pk_fma_f32 v[{acc}:{acc+1}], v[{t}:{t+1}], v[{t}:{t+1}], v[{acc}:{acc+1}]")
            A("    v_pk_add_f32 v[6:7], v[6:7], v[8:9]")
            A("    v_add_f32 v6, v6, v7")
        if tk2 and k in (1, 2):
            wg_reduce(6, k * 256 + 64, ticket=True)
            decide(k + 3)
            gb_load(k + 3)
        else:
            wg_reduce(6, k * 256 + 64)
        if safe and k == 3:
            A(f"    s_cmp_lg_u32 s{S_TK}, 255")
            A("    s_cbranch_scc1 L_noreset")
            A(f"    s_mov_b32 s24, 256")
            A(f"    s_mov_b32 s25, {256 - F}")
            A(f"    s_atomic_sub s24, s[12:13], 0")
            A(f"    s_atomic_sub s25, s[12:13], 64")
            A(f"    s_atomic_sub s24, s[12:13], 128")
            A("    s_waitcnt lgkmcnt(0)")
            A("L_noreset:")
        if k in (1, 2) and not tk2:
            A(f"    s_cmp_lg_u32 s{S_WAVE}, 0")
            A(f"    s_cbranch_scc1 L_notk{k}")
            if k == 2:
                A(f"    s_cmp_eq_u32 s{S_V4}, 0")
                A(f"    s_cbranch_scc1 L_notk{k}")
            A(f"    s_mov_b32 s{S_TK}, 1")
            A(f"    s_atomic_add s{S_TK}, s[12:13], {(k-1)*64} glc")
            A(f"L_notk{k}:")
        A(f"    s_and_b32 s30, s{SC+k}, 1")
        A(f"    s_lshl_b32 s31, s{SG+k}, 16")
        A(f"    s_and_b32 s24, s{SG+k}, s27")
        A("    s_cmp_eq_u32 s30, 1")
        A("    s_cselect_b32 s24, s24, s31")
        A(f"    s_lshl_b32 s31, s{SB+k}, 16")
        A(f"    s_and_b32 s25, s{SB+k}, s27")
        A("    s_cmp_eq_u32 s30, 1")
        A("    s_cselect_b32 s25, s25, s31")
        if mimic:
            A(f"    s_mov_b32 s{S_G1}, s24")
            A(f"    s_lshr_b32 s{S_G0}, s24, 16")
            A("    v_mul_f32 v17, 0x37800000, v16")
            rnd_bf16(17)
            A("    v_add_f32 v17, 0x3727c5ac, v17")
            rnd_bf16(17)
            A("    v_sqrt_f32 v17, v17")
            A("    s_nop 0")
            rnd_bf16(17)
            A("    v_rcp_f32 v12, v17")
            A("    s_nop 0")
            A("    v_fma_f32 v18, -v17, v12, 1.0")
            A("    v_fma_f32 v12, v18, v12, v12")
            A("    v_mov_b32 v13, s25")
            for j in range(NL):
                for q in range(4):
                    r = b + 4 * j + q
                    A(f"    v_lshlrev_b32 v{16+2*q}, 16, v{r}")
                    A(f"    v_and_b32 v{17+2*q}, s27, v{r}")
                for q in range(4):
                    A(f"    v_pk_mul_f32 v[{16+2*q}:{17+2*q}], v[{16+2*q}:{17+2*q}], v[12:13] op_sel_hi:[1,0]")
                for q in range(4):
                    A(f"    v_cvt_pk_bf16_f32 v{24+q}, v{16+2*q}, v{17+2*q}")
                for q in range(4):
                    A(f"    v_dot2_f32_bf16 v{16+2*q}, v{24+q}, s{S_G0}, 0")
                    A(f"    v_dot2_f32_bf16 v{17+2*q}, v{24+q}, s{S_G1}, 0")
                for q in range(4):
                    A(f"    v_cvt_pk_bf16_f32 v{24+q}, v{16+2*q}, v{17+2*q}")
                for q in range(4):
                    A(f"    v_dot2_f32_bf16 v{16+2*q}, v{24+q}, s{S_E0}, v13")
                    A(f"    v_dot2_f32_bf16 v{17+2*q}, v{24+q}, s{S_E1}, v13")
                for q in range(4):
                    r = b + 4 * j + q
                    A(f"    v_cvt_pk_bf16_f32 v{r}, v{16+2*q}, v{17+2*q}")
                if not sb:
                    so, im = addr(k, j)
                    A(f"    buffer_store_dwordx4 v[{b+4*j}:{b+4*j+3}], v1, s[20:23], {so} offen offset:{im} {st}".rstrip())
                    issued.append(("S", k, j))
        else:
            A("    v_mul_f32 v17, 0x37800000, v16")
            rnd_bf16(17)
            A("    v_add_f32 v17, 0x3727c5ac, v17")
            rnd_bf16(17)
            A("    v_sqrt_f32 v17, v17")
            A("    s_nop 0")
            rnd_bf16(17)
            A("    v_rcp_f32 v12, v17")
            A("    s_nop 0")
            A("    v_fma_f32 v18, -v17, v12, 1.0")
            A("    v_fma_f32 v12, v18, v12, v12")
            A("    v_mul_f32 v12, s24, v12")
            A("    v_mov_b32 v14, s25")
            A("    v_fma_f32 v14, v10, v12, v14")
            for j in range(NL):
                for q in range(4):
                    r = 4 * j + q
                    t = 16 + 2 * (r % 8)
                    A(f"    v_lshlrev_b32 v{t}, 16, v{b+r}")
                    A(f"    v_and_b32 v{t+1}, s27, v{b+r}")
                    A(f"    v_pk_fma_f32 v[{t}:{t+1}], v[{t}:{t+1}], v[12:13], v[14:15] op_sel_hi:[1,0,0]")
                    A(f"    v_cvt_pk_bf16_f32 v{b+r}, v{t}, v{t+1}")
                if not sb:
                    so, im = addr(k, j)
                    A(f"    buffer_store_dwordx4 v[{b+4*j}:{b+4*j+3}], v1, s[20:23], {so} offen offset:{im} {st}".rstrip())
                    issued.append(("S", k, j))
        if sb == 2:
            A("    s_barrier")
        if sb:
            for j in range(NL):
                so, im = addr(k, j)
                A(f"    buffer_store_dwordx4 v[{b+4*j}:{b+4*j+3}], v1, s[20:23], {so} offen offset:{im} {st}".rstrip())
                issued.append(("S", k, j))
        if T:
            A(f"    s_memrealtime s[{STAMP+2+2*k}:{STAMP+3+2*k}]")
        if k == 0 and lp == 0:
            A("    s_nop 1")
            loads(3)
        if tk2 and k in (1, 2):
            A("    s_nop 1")
            loads(k + 3)
        if k == 3:
            A(f"    s_cmp_eq_u32 s{S_V4}, 0")
            A("    s_cbranch_scc1 L_fin")
        if k == 4:
            A(f"    s_cmp_eq_u32 s{S_V5}, 0")
            A("    s_cbranch_scc1 L_fin")
    A("L_fin:")
    if T:
        A("    s_waitcnt vmcnt(0)")
        A(f"    s_memrealtime s[{STAMP+14}:{STAMP+15}]")
        A("    s_waitcnt lgkmcnt(0)")
        A("    v_cmp_eq_u32 vcc, 0, v0")
        A("    s_and_saveexec_b64 s[30:31], vcc")
        A("    s_cbranch_execz L_end")
        A("    s_lshl_b32 s14, s2, 7")
        A("    s_add_u32 s88, s88, s14")
        A("    s_addc_u32 s89, s89, 0")
        A("    v_mov_b32 v5, 0")
        for q in range(8):
            A(f"    v_mov_b32 v6, s{STAMP+2*q}")
            A(f"    global_store_dword v5, v6, s[88:89] offset:{4*q}")
        A("    s_getreg_b32 s14, hwreg(HW_REG_XCC_ID)")
        A("    v_mov_b32 v6, s14")
        A(f"    global_store_dword v5, v6, s[88:89] offset:32")
        A(f"    s_add_u32 s14, s{S_V4}, s{S_V5}")
        A("    v_mov_b32 v6, s14")
        A(f"    global_store_dword v5, v6, s[88:89] offset:36")
    A("L_end:")
    A("    s_endpgm")
    nv = D0 + ND * nb
    A('.section .rodata,"a"')
    A(".p2align 6")
    A(".amdhsa_kernel standalone__instancenorm__prompt_kernel")
    A(f"  .amdhsa_next_free_vgpr {nv}")
    A(f"  .amdhsa_next_free_sgpr {96}")
    A(f"  .amdhsa_accum_offset {(nv+3)//4*4}")
    A("  .amdhsa_group_segment_fixed_size 0")
    A("  .amdhsa_kernarg_size 48")
    A("  .amdhsa_user_sgpr_count 2")
    A("  .amdhsa_user_sgpr_kernarg_segment_ptr 1")
    A("  .amdhsa_system_sgpr_workgroup_id_x 1")
    A("  .amdhsa_float_denorm_mode_32 3")
    A(".end_amdhsa_kernel")
    return "\n".join(L) + "\n"

if __name__ == "__main__":
    out = sys.argv[1]
    kw = {}
    for a in sys.argv[2:]:
        k, v = a.split("=", 1)
        kw[k] = int(v) if k in ("F", "mimic", "stag", "w1", "sb", "map", "lp", "tk2", "p2d", "safe") else v
    open(out, "w").write(gen(**kw))
```

```python
import sys

HEADER = """; Kernarg layout for this problem (48 bytes, ptrs only, base s[0:1]):
"""

def gen(F=96, ld="nt", st="", mode="", mimic=1, stag=0, w1=4, sb=0, map=0, lp=0, tk2=0, p2d=0, safe=1, lit=0):
    threads, grid, nb = 1024, 256, 3
    NW, NL, ND = 16, 8, 32
    wave_bytes = NL * 1024
    CNT = 6
    nso = 2
    T = "T" in mode
    L = []
    def A(x):
        if lit and x.startswith("    v_and_b32") and ", s27, " in x:
            x = x.replace(", s27, ", ", 0xffff0000, ")
        L.append(x)
    A(HEADER.rstrip())
    A(f"; @launch grid=({grid},1,1) block=({threads},1,1) lds={CNT*256}")
    A('.amdgcn_target "amdgcn-amd-amdhsa--gfx950"')
    A(".text")
    A(".globl standalone__instancenorm__prompt_kernel")
    A(".p2align 8")
    A(".type standalone__instancenorm__prompt_kernel,@function")
    A("standalone__instancenorm__prompt_kernel:")
    D0 = 32
    SOFF = 32
    SG = 44
    SB = 50
    SC = 56
    S_WAVE = 62
    S_TK = 63
    S_V4 = 64
    S_V5 = 65
    S_E0 = 66
    S_E1 = 67
    S_G0 = 68
    S_G1 = 69
    STAMP = 70
    A(f"    s_cmp_ge_u32 s2, {grid}")
    A("    s_cbranch_scc1 L_end")
    if T:
        A(f"    s_memrealtime s[{STAMP}:{STAMP+1}]")
        A("    s_load_dwordx2 s[88:89], s[0:1], 40")
        for q in range(1, 9):
            A(f"    s_mov_b64 s[{STAMP+2*q}:{STAMP+2*q+1}], 0")
    A("    s_load_dwordx4 s[4:7], s[0:1], 0")
    A("    s_load_dwordx4 s[8:11], s[0:1], 16")
    A("    s_load_dwordx2 s[12:13], s[0:1], 32")
    A("    v_lshrrev_b32 v2, 6, v0")
    A("    v_and_b32 v3, 63, v0")
    A(f"    v_mul_u32_u24 v1, {wave_bytes if map == 0 else (1024 if map == 1 else 2048)}, v2")
    A("    v_lshl_add_u32 v1, v3, 4, v1")
    A(f"    v_readfirstlane_b32 s{S_WAVE}, v2")
    A("    v_lshlrev_b32 v2, 2, v2")
    A("    v_mov_b32 v3, 0")
    A("    v_mov_b32 v4, 0x3f803f80")
    A("    s_mov_b32 s27, 0xffff0000")
    A("    s_mov_b32 s28, 0")
    A("    s_mov_b32 s29, 0x80000000")
    A(f"    s_mov_b32 s{S_E0}, 0x00003f80")
    A(f"    s_mov_b32 s{S_E1}, 0x3f800000")
    A(f"    s_mov_b32 s{S_TK}, 0xffff")
    A("    s_mov_b32 s14, s2")
    for k in range(4):
        A(f"    s_lshl_b32 s{SOFF+2*k}, s14, 17")
        A(f"    s_add_u32 s{SOFF+2*k+1}, s{SOFF+2*k}, 4096")
        A(f"    s_sub_u32 s15, s14, 640")
        A(f"    s_cmp_ge_u32 s14, 640")
        A(f"    s_cselect_b32 s{SC+k}, s15, s14")
        if k != 3:
            A(f"    s_add_u32 s14, s14, {grid}")
    A("    s_waitcnt lgkmcnt(0)")
    A("    s_mov_b32 s16, s4")
    A("    s_and_b32 s17, s5, 0xffff")
    A("    s_mov_b32 s18, 167772160")
    A("    s_mov_b32 s19, 0x00020000")
    A("    s_mov_b32 s20, s10")
    A("    s_and_b32 s21, s11, 0xffff")
    A("    s_mov_b32 s22, 167772160")
    A("    s_mov_b32 s23, 0x00020000")
    if safe:
        A("    s_mov_b32 s92, s4")
        A("    s_and_b32 s93, s5, 0xffff")
        A("    s_mov_b32 s94, 0")
        A("    s_mov_b32 s95, 0x00020000")

    issued = []
    def addr(k, j):
        if map == 0:
            return f"s{SOFF+2*k+j//4}", (j % 4) * 1024
        if map == 1:
            if j == 0:
                return f"s{SOFF+2*k}", 0
            A(f"    s_add_u32 s{90+(j%2)}, s{SOFF+2*k}, {j*16384}")
            return f"s{90+(j%2)}", 0
        if map == 2:
            if j // 2 == 0:
                return f"s{SOFF+2*k}", (j % 2) * 1024
            if j % 2 == 0:
                A(f"    s_add_u32 s{90+((j//2)%2)}, s{SOFF+2*k}, {(j//2)*32768}")
            return f"s{90+((j//2)%2)}", (j % 2) * 1024
    def loads(k):
        b = D0 + (k % nb) * ND
        for j in range(NL):
            so, im = addr(k, j)
            srd = "s[92:95]" if (safe and k >= 4) else "s[16:19]"
            A(f"    buffer_load_dwordx4 v[{b+4*j}:{b+4*j+3}], v1, {srd}, {so} offen offset:{im} {ld}".rstrip())
            issued.append(("L", k, j))
    def gb_load(k):
        A(f"    s_lshl_b32 s15, s{SC+k}, 1")
        A(f"    s_and_b32 s15, s15, 0xfffffffc")
        A(f"    s_load_dword s{SG+k}, s[6:7], s15")
        A(f"    s_load_dword s{SB+k}, s[8:9], s15")
    if stag:
        loads(0)
        for k in range(4):
            gb_load(k)
        if stag == 1:
            A(f"    s_waitcnt vmcnt({w1})")
        else:
            A("    s_barrier")
        loads(1)
    else:
        for k in range(3):
            loads(k)
        for k in range(4):
            gb_load(k)

    def wave_reduce(acc):
        for ctl in ["row_shr:1 row_mask:0xf bank_mask:0xf bound_ctrl:0",
                    "row_shr:2 row_mask:0xf bank_mask:0xf bound_ctrl:0",
                    "row_shr:4 row_mask:0xf bank_mask:0xf bound_ctrl:0",
                    "row_shr:8 row_mask:0xf bank_mask:0xf bound_ctrl:0",
                    "row_bcast:15 row_mask:0xa bank_mask:0xf",
                    "row_bcast:31 row_mask:0xc bank_mask:0xf"]:
            A("    s_nop 1")
            A(f"    v_add_f32_dpp v{acc}, v{acc}, v{acc} {ctl}")

    def wg_reduce(acc, ldsoff, ticket=False):
        wave_reduce(acc)
        A("    s_mov_b64 exec, s[28:29]")
        A(f"    ds_write_b32 v2, v{acc} offset:{ldsoff}")
        if ticket:
            A("    s_waitcnt lgkmcnt(0)")
            A(f"    v_mov_b32 v7, s{S_TK}")
            A(f"    ds_write_b32 v2, v7 offset:{ldsoff+128}")
        A("    s_mov_b64 exec, -1")
        A("    s_waitcnt lgkmcnt(0)")
        A("    s_barrier")
        for q in range(NW // 4):
            A(f"    ds_read_b128 v[{16+4*q}:{16+4*q+3}], v3 offset:{ldsoff+16*q}")
        if ticket:
            A(f"    ds_read_b32 v7, v3 offset:{ldsoff+128}")
        A("    s_waitcnt lgkmcnt(0)")
        if ticket:
            A(f"    v_readfirstlane_b32 s24, v7")
        n = NW
        while n > 2:
            h = n // 2
            for p in range(0, h, 2):
                A(f"    v_pk_add_f32 v[{16+p}:{16+p+1}], v[{16+p}:{16+p+1}], v[{16+h+p}:{16+h+p+1}]")
            n = h
        A("    v_add_f32 v16, v16, v17")

    def rnd_bf16(v):
        A(f"    v_cvt_pk_bf16_f32 v{v}, v{v}, v{v}")
        A(f"    v_and_b32 v{v}, s27, v{v}")

    def take_ticket(k):
        A(f"    s_cmp_lg_u32 s{S_WAVE}, 0")
        A(f"    s_cbranch_scc1 L_notk{k}")
        if k == 2:
            A(f"    s_cmp_eq_u32 s{S_V4}, 0")
            A(f"    s_cbranch_scc1 L_notk{k}")
        A(f"    s_mov_b32 s{S_TK}, 1")
        A(f"    s_atomic_add s{S_TK}, s[12:13], {(k-1)*64} glc")
        A(f"L_notk{k}:")
    def decide(kk):
        first = kk == 4
        lim = 256 - F if first else F
        base = 1024 if first else 1024 + 256 - F
        vflag = S_V4 if first else S_V5
        A(f"    s_add_u32 s25, s24, {base}")
        A(f"    s_cmp_lt_u32 s24, {lim}")
        A(f"    s_cselect_b32 s{vflag}, 1, 0")
        A(f"    s_cselect_b32 s25, s25, 1279")
        A(f"    s_lshl_b32 s26, s25, 17")
        A(f"    s_cmp_lt_u32 s24, {lim}")
        A(f"    s_cselect_b32 s{SOFF+2*kk}, s26, 0x80000000")
        A(f"    s_add_u32 s{SOFF+2*kk+1}, s{SOFF+2*kk}, 4096")
        A(f"    s_sub_u32 s{SC+kk}, s25, 640")
        A(f"    s_mov_b32 s{S_TK}, 0xffff")

    for k in range(CNT):
        b = D0 + (k % nb) * ND
        A(f"    ; ---- iteration {k}")
        if tk2 == 1 and k in (1, 2):
            take_ticket(k)
        for a in range(4):
            A(f"    v_mov_b32 v{6+a}, 0")
        for j in range(NL):
            pos = issued.index(("L", k, j))
            n = len(issued) - 1 - pos
            assert n <= 63
            A(f"    s_waitcnt vmcnt({n})")
            for q in range(4):
                A(f"    v_dot2c_f32_bf16 v{6+q}, v{b+4*j+q}, v4")
        if stag == 1 and k == 0:
            loads(2)
        A("    s_nop 2")
        A("    v_add_f32 v6, v6, v7")
        A("    v_add_f32 v8, v8, v9")
        A("    v_add_f32 v6, v6, v8")
        tk = k in (2, 3) and not tk2
        wg_reduce(6, k * 256, ticket=tk)
        if tk2 == 2 and k in (1, 2):
            take_ticket(k)
        if stag == 2 and k == 0:
            loads(2)
        if lp == 1 and k == 1:
            loads(3)
        if tk:
            kk = k + 2
            lim = 256 - F if k == 2 else F
            base = 1024 if k == 2 else 1024 + 256 - F
            vflag = S_V4 if k == 2 else S_V5
            A(f"    s_add_u32 s25, s24, {base}")
            A(f"    s_cmp_lt_u32 s24, {lim}")
            A(f"    s_cselect_b32 s{vflag}, 1, 0")
            A(f"    s_cselect_b32 s25, s25, 1279")
            if safe:
                A(f"    s_cselect_b32 s94, 167772160, 0")
                A(f"    s_lshl_b32 s{SOFF+2*kk}, s25, 17")
            else:
                A(f"    s_lshl_b32 s26, s25, 17")
                A(f"    s_cmp_lt_u32 s24, {lim}")
                A(f"    s_cselect_b32 s{SOFF+2*kk}, s26, 0x80000000")
            A(f"    s_add_u32 s{SOFF+2*kk+1}, s{SOFF+2*kk}, 4096")
            A(f"    s_sub_u32 s{SC+kk}, s25, 640")
            A(f"    s_mov_b32 s{S_TK}, 0xffff")
            loads(kk)
            gb_load(kk)
            if safe and k == 3:
                A(f"    s_cmp_lg_u32 s{S_WAVE}, 0")
                A("    s_cbranch_scc1 L_nodone")
                A(f"    s_mov_b32 s{S_TK}, 1")
                A(f"    s_atomic_add s{S_TK}, s[12:13], 128 glc")
                A("L_nodone:")
        A("    v_mul_f32 v10, 0x37800000, v16")
        rnd_bf16(10)
        A("    v_xor_b32 v10, 0x80000000, v10")
        for a in range(4):
            A(f"    v_mov_b32 v{6+a}, 0")
        if mimic:
            for j in range(NL):
                for q in range(4):
                    r = b + 4 * j + q
                    A(f"    v_dot2_f32_bf16 v{16+2*q}, v{r}, s{S_E0}, v10")
                    A(f"    v_dot2_f32_bf16 v{17+2*q}, v{r}, s{S_E1}, v10")
                for q in range(4):
                    r = b + 4 * j + q
                    A(f"    v_cvt_pk_bf16_f32 v{r}, v{16+2*q}, v{17+2*q}")
                for q in range(4):
                    r = b + 4 * j + q
                    A(f"    v_dot2c_f32_bf16 v{6+q}, v{r}, v{r}")
            A("    s_nop 2")
            A("    v_add_f32 v6, v6, v7")
            A("    v_add_f32 v8, v8, v9")
            A("    v_add_f32 v6, v6, v8")
        elif p2d:
            for j in range(NL):
                for q in range(4):
                    r = b + 4 * j + q
                    t = 16 + 8 * (j % 2) + 2 * q
                    A(f"    v_dot2_f32_bf16 v{t}, v{r}, s{S_E0}, v10")
                    A(f"    v_dot2_f32_bf16 v{t+1}, v{r}, s{S_E1}, v10")
                    if j > 0:
                        tp = 16 + 8 * ((j - 1) % 2) + 2 * q
                        acc = 6 + 2 * (q % 2)
                        A(f"    v_pk_fma_f32 v[{acc}:{acc+1}], v[{tp}:{tp+1}], v[{tp}:{tp+1}], v[{acc}:{acc+1}]")
            A("    s_nop 1")
            for q in range(4):
                tp = 16 + 8 * ((NL - 1) % 2) + 2 * q
                acc = 6 + 2 * (q % 2)
                A(f"    v_pk_fma_f32 v[{acc}:{acc+1}], v[{tp}:{tp+1}], v[{tp}:{tp+1}], v[{acc}:{acc+1}]")
            A("    v_pk_add_f32 v[6:7], v[6:7], v[8:9]")
            A("    v_add_f32 v6, v6, v7")
        else:
            for r in range(ND):
                t = 16 + 2 * (r % 8)
                acc = 6 + 2 * (r % 2)
                A(f"    v_lshlrev_b32 v{t}, 16, v{b+r}")
                A(f"    v_and_b32 v{t+1}, s27, v{b+r}")
                A(f"    v_pk_add_f32 v[{t}:{t+1}], v[{t}:{t+1}], v[10:11] op_sel_hi:[1,0]")
                A(f"    v_pk_fma_f32 v[{acc}:{acc+1}], v[{t}:{t+1}], v[{t}:{t+1}], v[{acc}:{acc+1}]")
            A("    v_pk_add_f32 v[6:7], v[6:7], v[8:9]")
            A("    v_add_f32 v6, v6, v7")
        if tk2 and k in (1, 2):
            wg_reduce(6, k * 256 + 64, ticket=True)
            decide(k + 3)
            gb_load(k + 3)
        else:
            wg_reduce(6, k * 256 + 64)
        if safe and k == 3:
            A(f"    s_cmp_lg_u32 s{S_TK}, 255")
            A("    s_cbranch_scc1 L_noreset")
            A(f"    s_mov_b32 s24, 256")
            A(f"    s_mov_b32 s25, {256 - F}")
            A(f"    s_atomic_sub s24, s[12:13], 0")
            A(f"    s_atomic_sub s25, s[12:13], 64")
            A(f"    s_atomic_sub s24, s[12:13], 128")
            A("    s_waitcnt lgkmcnt(0)")
            A("L_noreset:")
        if k in (1, 2) and not tk2:
            A(f"    s_cmp_lg_u32 s{S_WAVE}, 0")
            A(f"    s_cbranch_scc1 L_notk{k}")
            if k == 2:
                A(f"    s_cmp_eq_u32 s{S_V4}, 0")
                A(f"    s_cbranch_scc1 L_notk{k}")
            A(f"    s_mov_b32 s{S_TK}, 1")
            A(f"    s_atomic_add s{S_TK}, s[12:13], {(k-1)*64} glc")
            A(f"L_notk{k}:")
        A(f"    s_and_b32 s30, s{SC+k}, 1")
        A(f"    s_lshl_b32 s31, s{SG+k}, 16")
        A(f"    s_and_b32 s24, s{SG+k}, s27")
        A("    s_cmp_eq_u32 s30, 1")
        A("    s_cselect_b32 s24, s24, s31")
        A(f"    s_lshl_b32 s31, s{SB+k}, 16")
        A(f"    s_and_b32 s25, s{SB+k}, s27")
        A("    s_cmp_eq_u32 s30, 1")
        A("    s_cselect_b32 s25, s25, s31")
        if mimic:
            A(f"    s_mov_b32 s{S_G1}, s24")
            A(f"    s_lshr_b32 s{S_G0}, s24, 16")
            A("    v_mul_f32 v17, 0x37800000, v16")
            rnd_bf16(17)
            A("    v_add_f32 v17, 0x3727c5ac, v17")
            rnd_bf16(17)
            A("    v_sqrt_f32 v17, v17")
            A("    s_nop 0")
            rnd_bf16(17)
            A("    v_rcp_f32 v12, v17")
            A("    s_nop 0")
            A("    v_fma_f32 v18, -v17, v12, 1.0")
            A("    v_fma_f32 v12, v18, v12, v12")
            A("    v_mov_b32 v13, s25")
            for j in range(NL):
                for q in range(4):
                    r = b + 4 * j + q
                    A(f"    v_lshlrev_b32 v{16+2*q}, 16, v{r}")
                    A(f"    v_and_b32 v{17+2*q}, s27, v{r}")
                for q in range(4):
                    A(f"    v_pk_mul_f32 v[{16+2*q}:{17+2*q}], v[{16+2*q}:{17+2*q}], v[12:13] op_sel_hi:[1,0]")
                for q in range(4):
                    A(f"    v_cvt_pk_bf16_f32 v{24+q}, v{16+2*q}, v{17+2*q}")
                for q in range(4):
                    A(f"    v_dot2_f32_bf16 v{16+2*q}, v{24+q}, s{S_G0}, 0")
                    A(f"    v_dot2_f32_bf16 v{17+2*q}, v{24+q}, s{S_G1}, 0")
                for q in range(4):
                    A(f"    v_cvt_pk_bf16_f32 v{24+q}, v{16+2*q}, v{17+2*q}")
                for q in range(4):
                    A(f"    v_dot2_f32_bf16 v{16+2*q}, v{24+q}, s{S_E0}, v13")
                    A(f"    v_dot2_f32_bf16 v{17+2*q}, v{24+q}, s{S_E1}, v13")
                for q in range(4):
                    r = b + 4 * j + q
                    A(f"    v_cvt_pk_bf16_f32 v{r}, v{16+2*q}, v{17+2*q}")
                if not sb:
                    so, im = addr(k, j)
                    A(f"    buffer_store_dwordx4 v[{b+4*j}:{b+4*j+3}], v1, s[20:23], {so} offen offset:{im} {st}".rstrip())
                    issued.append(("S", k, j))
        else:
            A("    v_mul_f32 v17, 0x37800000, v16")
            rnd_bf16(17)
            A("    v_add_f32 v17, 0x3727c5ac, v17")
            rnd_bf16(17)
            A("    v_sqrt_f32 v17, v17")
            A("    s_nop 0")
            rnd_bf16(17)
            A("    v_rcp_f32 v12, v17")
            A("    s_nop 0")
            A("    v_fma_f32 v18, -v17, v12, 1.0")
            A("    v_fma_f32 v12, v18, v12, v12")
            A("    v_mul_f32 v12, s24, v12")
            A("    v_mov_b32 v14, s25")
            A("    v_fma_f32 v14, v10, v12, v14")
            for j in range(NL):
                for q in range(4):
                    r = 4 * j + q
                    t = 16 + 2 * (r % 8)
                    A(f"    v_lshlrev_b32 v{t}, 16, v{b+r}")
                    A(f"    v_and_b32 v{t+1}, s27, v{b+r}")
                    A(f"    v_pk_fma_f32 v[{t}:{t+1}], v[{t}:{t+1}], v[12:13], v[14:15] op_sel_hi:[1,0,0]")
                    A(f"    v_cvt_pk_bf16_f32 v{b+r}, v{t}, v{t+1}")
                if not sb:
                    so, im = addr(k, j)
                    A(f"    buffer_store_dwordx4 v[{b+4*j}:{b+4*j+3}], v1, s[20:23], {so} offen offset:{im} {st}".rstrip())
                    issued.append(("S", k, j))
        if sb == 2:
            A("    s_barrier")
        if sb:
            for j in range(NL):
                so, im = addr(k, j)
                A(f"    buffer_store_dwordx4 v[{b+4*j}:{b+4*j+3}], v1, s[20:23], {so} offen offset:{im} {st}".rstrip())
                issued.append(("S", k, j))
        if T:
            A(f"    s_memrealtime s[{STAMP+2+2*k}:{STAMP+3+2*k}]")
        if k == 0 and lp == 0:
            A("    s_nop 1")
            loads(3)
        if tk2 and k in (1, 2):
            A("    s_nop 1")
            loads(k + 3)
        if k == 3:
            A(f"    s_cmp_eq_u32 s{S_V4}, 0")
            A("    s_cbranch_scc1 L_fin")
        if k == 4:
            A(f"    s_cmp_eq_u32 s{S_V5}, 0")
            A("    s_cbranch_scc1 L_fin")
    A("L_fin:")
    if T:
        A("    s_waitcnt vmcnt(0)")
        A(f"    s_memrealtime s[{STAMP+14}:{STAMP+15}]")
        A("    s_waitcnt lgkmcnt(0)")
        A("    v_cmp_eq_u32 vcc, 0, v0")
        A("    s_and_saveexec_b64 s[30:31], vcc")
        A("    s_cbranch_execz L_end")
        A("    s_lshl_b32 s14, s2, 7")
        A("    s_add_u32 s88, s88, s14")
        A("    s_addc_u32 s89, s89, 0")
        A("    v_mov_b32 v5, 0")
        for q in range(8):
            A(f"    v_mov_b32 v6, s{STAMP+2*q}")
            A(f"    global_store_dword v5, v6, s[88:89] offset:{4*q}")
        A("    s_getreg_b32 s14, hwreg(HW_REG_XCC_ID)")
        A("    v_mov_b32 v6, s14")
        A(f"    global_store_dword v5, v6, s[88:89] offset:32")
        A(f"    s_add_u32 s14, s{S_V4}, s{S_V5}")
        A("    v_mov_b32 v6, s14")
        A(f"    global_store_dword v5, v6, s[88:89] offset:36")
    A("L_end:")
    A("    s_endpgm")
    nv = D0 + ND * nb
    A('.section .rodata,"a"')
    A(".p2align 6")
    A(".amdhsa_kernel standalone__instancenorm__prompt_kernel")
    A(f"  .amdhsa_next_free_vgpr {nv}")
    A(f"  .amdhsa_next_free_sgpr {96}")
    A(f"  .amdhsa_accum_offset {(nv+3)//4*4}")
    A("  .amdhsa_group_segment_fixed_size 0")
    A("  .amdhsa_kernarg_size 48")
    A("  .amdhsa_user_sgpr_count 2")
    A("  .amdhsa_user_sgpr_kernarg_segment_ptr 1")
    A("  .amdhsa_system_sgpr_workgroup_id_x 1")
    A("  .amdhsa_float_denorm_mode_32 3")
    A(".end_amdhsa_kernel")
    return "\n".join(L) + "\n"

if __name__ == "__main__":
    out = sys.argv[1]
    kw = {}
    for a in sys.argv[2:]:
        k, v = a.split("=", 1)
        kw[k] = int(v) if k in ("F", "mimic", "stag", "w1", "sb", "map", "lp", "tk2", "p2d", "safe", "lit") else v
    open(out, "w").write(gen(**kw))
```
